```python
import torch

def _softmax(x, axis=-1):
    return torch.softmax(x, dim=axis)
def _gelu(x):
    return torch.nn.functional.gelu(x, approximate="tanh")
def _silu(x):
    return torch.nn.functional.silu(x)
def _sigmoid(x):
    return torch.sigmoid(x)
def _layernorm(x, axis=-1, eps=1e-5):
    m = x.mean(dim=axis, keepdim=True)
    v = x.var(dim=axis, keepdim=True, unbiased=False)
    return (x - m) / torch.sqrt(v + eps)
def _scatter_add(tgt, idx, src, axis=0):
    return tgt.clone().index_add_(axis, idx, src)
def _segment_sum(src, seg, n):
    out = torch.zeros((n,) + src.shape[1:], dtype=src.dtype)
    return out.index_add_(0, seg, src)
def _pad(x, pw):
    flat = tuple(v for pair in reversed(pw) for v in pair)
    return torch.nn.functional.pad(x, flat)

kernel_name = 'parallel_sum__sliding_local_dilated__dense_activation_gelu__prompt'

def setup_inputs():

    _w = (lambda a: (lambda t: t.to(torch.bfloat16) if t.is_floating_point() else t)(torch.as_tensor(a)))
    def _A_setup():
        B, S, D = 1, 2048, 448
        return {
            "x": _w((lambda *s: torch.randn(*s, dtype=torch.bfloat16) * 0.05)(B, S, D)),
            "wqkv": _w((lambda *s: torch.randn(*s, dtype=torch.bfloat16) * 0.05)(D, 3 * D)),
            "wo": _w((lambda *s: torch.randn(*s, dtype=torch.bfloat16) * 0.05)(D, D)),
        }
    _A_in = _A_setup()

    def _B_setup():
        B, S, D, F = 1, 2048, 448, 1792
        return {
            "x": _w((lambda *s: torch.randn(*s, dtype=torch.bfloat16) * 0.05)(B, S, D)),
            "w1": _w((lambda *s: torch.randn(*s, dtype=torch.bfloat16) * 0.8)(D, F) * (D ** -0.5)),
            "b1": _w((lambda *s: torch.randn(*s, dtype=torch.bfloat16) * 0.8)(F) * 0.01),
            "w2": _w((lambda *s: torch.randn(*s, dtype=torch.bfloat16) * 0.8)(F, D) * (F ** -0.5)),
            "b2": _w((lambda *s: torch.randn(*s, dtype=torch.bfloat16) * 0.8)(D) * 0.01),
        }
    _B_in = _B_setup()

    return {
        "A_x": _A_in["x"],
        "A_wqkv": _A_in["wqkv"],
        "A_wo": _A_in["wo"],
        "B_x": _B_in["x"],
        "B_w1": _B_in["w1"],
        "B_b1": _B_in["b1"],
        "B_w2": _B_in["w2"],
        "B_b2": _B_in["b2"],
    }

def reference(A_x, A_wqkv, A_wo, B_x, B_w1, B_b1, B_w2, B_b2):
    def _A_ref(x, wqkv, wo):
        B, S, D = x.shape
        H = 16; Dh = D // H
        W, dil = 8, 2
        qkv = (lambda x, *d: x.permute(*d))((x @ wqkv).reshape(B, S, 3, H, Dh), 2, 0, 3, 1, 4)
        q, k, v = qkv[0], qkv[1], qkv[2]
        scale = Dh ** -0.5
        pos = torch.arange(S)
        off = torch.arange(W) * dil
        idx = pos[:, None] - off[None, :]
        mask = idx >= 0
        idx_c = torch.where(mask, idx, 0).reshape(-1)
        kg = k[:, :, idx_c, :].reshape(B, H, S, W, Dh)
        vg = v[:, :, idx_c, :].reshape(B, H, S, W, Dh)
        logits = torch.einsum("bhsd,bhswd->bhsw", q, kg) * scale
        logits = torch.where(mask[None, None, :, :], logits, -1e9)
        attn = _softmax(logits, axis=-1)
        o = torch.einsum("bhsw,bhswd->bhsd", attn, vg)
        return (lambda x, *d: x.permute(*d))(o, 0, 2, 1, 3).reshape(B, S, D) @ wo

    def _B_ref(x, w1, b1, w2, b2):
        h = torch.einsum("bsd,df->bsf", x, w1) + b1
        h = _gelu(h)
        return torch.einsum("bsf,fd->bsd", h, w2) + b2

    x = A_x
    xn = _layernorm(x, axis=-1)
    return x + _A_ref(xn, A_wqkv, A_wo) + _B_ref(xn, B_w1, B_b1, B_w2, B_b2)
```

```python
import re

TRANS = ("v_exp_f32", "v_log_f32", "v_rcp_f32", "v_rsq_f32", "v_sqrt_f32", "v_sin_f32", "v_cos_f32")
NODST_S = ("s_cmp", "s_waitcnt", "s_barrier", "s_cbranch", "s_branch", "s_nop", "s_sleep", "s_setprio", "s_endpgm", "s_bitcmp")

def regs(tok):
    tok = tok.strip()
    tok = tok.lstrip("-")
    if tok.startswith("abs(") or tok.startswith("|"):
        tok = tok.replace("abs(", "").replace(")", "").replace("|", "")
    m = re.fullmatch(r"([vsa])(\d+)", tok)
    if m: return {(m.group(1), int(m.group(2)))}
    m = re.fullmatch(r"([vsa])\[(\d+):(\d+)\]", tok)
    if m: return {(m.group(1), i) for i in range(int(m.group(2)), int(m.group(3)) + 1)}
    if tok in ("vcc", "vcc_lo", "vcc_hi"): return {("s", "vcc")}
    if tok in ("exec", "exec_lo", "exec_hi"): return {("s", "exec")}
    if tok == "m0": return {("s", "m0")}
    return set()

class Ins:
    def __init__(self, text):
        self.text = text
        t = text.split(";")[0].strip()
        parts = t.split(None, 1)
        self.op = parts[0]
        rest = parts[1] if len(parts) > 1 else ""
        ops = [o.strip() for o in rest.split(",")] if rest else []
        mods = ""
        clean = []
        depth_join = []
        for o in ops:
            clean.append(o)
        first = []
        for o in clean:
            w = o.split()
            first.append(w[0] if w else "")
            mods += " " + " ".join(w[1:])
        self.ops = first
        self.mods = mods
        op = self.op
        self.states = 1
        self.cls = "other"
        self.dst = set(); self.src = set(); self.passes = 0
        self.srcC = set(); self.srcAB = set(); self.data = set()
        R = lambda i: regs(first[i]) if i < len(first) else set()
        allsrc = lambda a: set().union(*[R(i) for i in range(a, len(first))]) if len(first) > a else set()
        if op == "s_nop":
            self.states = int(first[0], 0) + 1
        elif op.startswith("v_mfma"):
            self.cls = "mfma"; self.passes = 8 if "32x32" in op else 4
            self.dst = R(0); self.srcAB = R(1) | R(2); self.srcC = R(3); self.src = self.srcAB | self.srcC
        elif op.startswith("v_"):
            self.cls = "valu"
            self.dst = R(0); self.src = allsrc(1)
            if op.startswith(("v_fmac", "v_dot2c", "v_permlane")): self.src |= R(0)
            if op.startswith("v_permlane"): self.dst |= R(1)
            if op.startswith(("v_add_co", "v_sub_co", "v_addc_co")): self.dst |= R(1)
            if op.startswith("v_cndmask") and len(first) == 3: self.src |= {("s", "vcc")}
        elif op.startswith("ds_"):
            self.cls = "ds"
            if op.startswith(("ds_read", "ds_bpermute", "ds_swizzle")): self.dst = R(0); self.src = allsrc(1)
            else: self.src = allsrc(0)
        elif op.startswith(("buffer_", "global_")):
            self.cls = "vmem"
            if " lds" in mods + " " or "load_lds" in op:
                self.src = allsrc(0) | {("s", "m0")}; self.lds = True
            elif "load" in op: self.dst = R(0); self.src = allsrc(1)
            else:
                self.src = allsrc(0)
                if "x4" in op or "x3" in op: self.data = R(0) if op.startswith("buffer_") else R(1)
        elif op.startswith(("s_load", "s_memtime", "s_memrealtime", "s_buffer_load")):
            self.cls = "smem"; self.dst = R(0); self.src = allsrc(1)
        elif op.startswith("s_"):
            self.cls = "salu"
            if op.startswith(NODST_S): self.src = allsrc(0)
            else: self.dst = R(0); self.src = allsrc(1)
        self.trans = op.startswith(TRANS)
        self.dot = op.startswith("v_dot")
        self.dpp = "_dpp" in op
        self.perm = op.startswith("v_permlane")
        self.rdlane = op.startswith(("v_readfirstlane", "v_readlane"))
        self.isdma = self.cls == "vmem" and hasattr(self, "lds")

def need(p, c):
    n = 0
    pv = {r for r in p.dst if r[0] in "va"}
    ps = {r for r in p.dst if r[0] == "s"}
    if p.cls == "valu":
        if c.cls == "mfma" and pv & c.src: n = max(n, 2)
        if p.trans and not c.trans and pv & c.src: n = max(n, 1)
        if (c.perm or c.dpp) and pv & c.src: n = max(n, 2)
        if c.rdlane and pv & c.src: n = max(n, 1)
        if ps & c.src:
            if c.cls == "valu": n = max(n, 4 if c.rdlane else 2)
            if c.cls == "vmem": n = max(n, 5)
            if c.cls in ("salu", "smem"): n = max(n, 1)
        if p.dot and c.cls in ("valu", "mfma", "ds", "vmem") and pv & (c.src | c.dst):
            same_c = c.op == p.op and c.dst == p.dst and (c.op.startswith("v_dot2c") and not (pv & (regs(c.ops[1]) | regs(c.ops[2]))))
            if not same_c: n = max(n, 3)
    if p.cls == "mfma":
        big = 12 if p.passes == 8 else 8
        if c.cls == "mfma":
            if p.dst & c.srcAB: n = max(n, big)
            if p.dst & c.srcC and not (p.dst == c.srcC and p.passes == c.passes): n = max(n, big - 2)
        elif c.cls in ("valu", "ds", "vmem"):
            if p.dst & (c.src | c.dst): n = max(n, big)
        if c.cls == "valu" and p.srcC & c.dst: n = max(n, 7 if p.passes == 8 else 3)
    if p.cls == "vmem" and p.data & c.dst:
        n = max(n, 2 if c.cls in ("valu", "mfma") else 1)
    if p.cls == "salu" and ("s", "m0") in p.dst and c.isdma: n = max(n, 1)
    return n

class Emit:
    def __init__(self):
        self.out = []
        self.hist = []
        self.vm_n = 0; self.vm_done = 0
        self.lg_n = 0; self.lg_done = 0
        self.nops = 0
        self.ninstr = 0
    def raw(self, s):
        self.out.append(s)
    def label(self, name, keep=False):
        self.out.append(name + ":")
    def comment(self, s):
        self.out.append("    ; " + s)
    def fence(self, n=12):
        self.hist = []
    def fork(self):
        return (list(self.hist), self.vm_n, self.vm_done, self.lg_n, self.lg_done)
    def restore(self, st):
        self.hist, self.vm_n, self.vm_done, self.lg_n, self.lg_done = list(st[0]), st[1], st[2], st[3], st[4]
    def __call__(self, text):
        c = Ins(text)
        dist = 0; pad = 0
        for p in reversed(self.hist):
            k = need(p, c)
            if k > dist: pad = max(pad, k - dist)
            dist += p.states
            if dist >= 20: break
        while pad > 0:
            k = min(pad, 16)
            nop = Ins(f"s_nop {k-1}")
            self.out.append("    " + nop.text); self.hist.append(nop); self.nops += k; pad -= k
        self.out.append("    " + text)
        self.hist.append(c)
        if len(self.hist) > 40: self.hist = self.hist[-30:]
        self.ninstr += 1
        if c.cls == "vmem":
            self.vm_n += 1; return self.vm_n
        if c.cls == "ds":
            self.lg_n += 1; return self.lg_n
        return None
    def wait(self, vm=None, lg=None):
        s = ""
        if vm is not None and vm > self.vm_done:
            n = min(self.vm_n - vm, 62); s += f" vmcnt({n})"; self.vm_done = self.vm_n - n
        if lg is not None and lg > self.lg_done:
            n = min(self.lg_n - lg, 14); s += f" lgkmcnt({n})"; self.lg_done = self.lg_n - n
        if s: self("s_waitcnt" + s)
    def wait_all(self, vm=True, lg=True, force=False):
        s = ""
        if vm and (force or self.vm_done < self.vm_n): s += " vmcnt(0)"; self.vm_done = self.vm_n
        if lg and (force or self.lg_done < self.lg_n): s += " lgkmcnt(0)"; self.lg_done = self.lg_n
        if s: self("s_waitcnt" + s)
    def text(self):
        return "\n".join(self.out) + "\n"

def vr(a, n=1):
    return f"v{a}" if n == 1 else f"v[{a}:{a+n-1}]"
def sr(a, n=1):
    return f"s{a}" if n == 1 else f"s[{a}:{a+n-1}]"

def merge(*streams):
    streams = [s for s in streams if s]
    items = []
    for si, s in enumerate(streams):
        for i, f in enumerate(s):
            items.append(((i + 0.5) / len(s), si, i, f))
    items.sort(key=lambda t: (t[0], t[1], t[2]))
    return [t[3] for t in items]
```

```python
import sys, struct, math
from core import *

KNAME = "parallel_sum__sliding_local_dilated__dense_activation_gelu__prompt_kernel"
def f2u(x): return struct.unpack("<I", struct.pack("<f", x))[0]
def hx(x): return "0x%08x" % (x & 0xffffffff)

S_WAVE, S_SL, S_TILE, S_RANK = 3, 26, 27, 28
S_ONES, S_HMASK = 29, 30
S_T0, S_T1, S_T2, S_T3 = 31, 32, 33, 34
S_DMAL = 35
SRD_X, SRD_A, SRD_B, SRD_WS, SRD_T = 36, 40, 44, 48, 52
S_GA, S_GB, S_PB, S_SOFF = 56, 57, 58, 59
S_K2 = 60
STAMP0 = 64

XP_F = 912
BIAS_OFF = 58368
RING_F = 60416; NRING_F = 12
XP_A = 928
RING_A = 74240; NRING_A = 10
OP = 240
WO_OFF = 16384; WO_BLK = 14336
PART_BYTES = 256 * 57344

class Gen:
    def __init__(self, **o):
        self.o = dict(depth=4, stamps=False, prefetch=True, fused=False)
        self.o.update(o)
        self.e = Emit()
        self.nst = 0

    def stamp(self, i):
        if self.o["stamps"]:
            self.e.raw(f"    s_memrealtime s[{STAMP0+2*i}:{STAMP0+2*i+1}]")
            self.nst = max(self.nst, i + 1)

    def srd(self, d, b, n):
        e = self.e
        e(f"s_mov_b32 s{d}, s{b}"); e(f"s_mov_b32 s{d+1}, s{b+1}"); e(f"s_mov_b32 s{d+2}, {n}"); e(f"s_mov_b32 s{d+3}, 0x20000")

    def write_stamps(self, tag):
        if not self.o["stamps"]: return
        e = self.e
        n = 16
        e("s_waitcnt vmcnt(0) lgkmcnt(0)")
        e(f"s_and_b32 s{S_T0}, s{S_WAVE}, 3"); e(f"s_cmp_lg_u32 s{S_T0}, 0"); e(f"s_cbranch_scc1 L_nost_{tag}")
        e(f"s_add_u32 s{SRD_T}, s24, {128<<20}"); e(f"s_addc_u32 s{SRD_T+1}, s25, 0"); e(f"s_mov_b32 s{SRD_T+2}, 0x100000"); e(f"s_mov_b32 s{SRD_T+3}, 0x20000")
        e(f"s_lshl_b32 s{S_T0}, s2, 8"); e(f"s_lshl_b32 s{S_T1}, s{S_WAVE}, 5"); e(f"s_add_u32 s{S_T0}, s{S_T0}, s{S_T1}")
        e("v_mov_b32 v1, 0"); e("s_mov_b64 exec, 1")
        for i in range(n):
            e(f"v_mov_b32 v{2+2*i}, s{STAMP0+2*i}"); e(f"v_mov_b32 v{3+2*i}, s{STAMP0+2*i+1}")
            e(f"buffer_store_dwordx2 v[{2+2*i}:{3+2*i}], v1, s[{SRD_T}:{SRD_T+3}], s{S_T0} offen offset:{8*i}")
        e.label(f"L_nost_{tag}")

    def ln_stats(self, R, toks, T, between=None):
        e = self.e
        e(f"v_mov_b32 v{T}, 0"); e(f"v_mov_b32 v{T+1}, 0")
        for i in range(7):
            e.wait(vm=toks[i])
            for j in range(4):
                r = R + 4*i + j
                e(f"v_dot2c_f32_bf16 v{T}, s{S_ONES}, v{r}")
                e(f"v_dot2c_f32_bf16 v{T+1}, v{r}, v{r}")
            if between and i in between: between[i]()
        for m in ("quad_perm:[1,0,3,2]", "quad_perm:[2,3,0,1]", "row_half_mirror"):
            e(f"v_add_f32_dpp v{T}, v{T}, v{T} {m} row_mask:0xf bank_mask:0xf")
            e(f"v_add_f32_dpp v{T+1}, v{T+1}, v{T+1} {m} row_mask:0xf bank_mask:0xf")
        e(f"v_mul_f32 v{T}, {hx(f2u(1/448))}, v{T}")
        e(f"v_mul_f32 v{T+1}, {hx(f2u(1/448))}, v{T+1}")
        e(f"v_fma_f32 v{T+1}, -v{T}, v{T}, v{T+1}")
        e(f"v_max_f32 v{T+1}, 0, v{T+1}")
        e(f"v_add_f32 v{T+1}, {hx(f2u(1e-5))}, v{T+1}")
        e(f"v_rsq_f32 v{T+2}, v{T+1}")
        e(f"v_mul_f32 v{T+4}, v{T}, v{T+2}")
        e(f"v_sub_f32 v{T+4}, 0, v{T+4}")
    def ln_apply(self, R, T, vW, woff=0, between=None):
        e = self.e
        U = T + 6
        last = None
        for i in range(7):
            for j in range(4):
                r = R + 4*i + j
                e(f"v_lshlrev_b32 v{U+2*j}, 16, v{r}")
                e(f"v_and_b32 v{U+2*j+1}, s{S_HMASK}, v{r}")
            for j in range(4):
                e(f"v_pk_fma_f32 v[{U+2*j}:{U+2*j+1}], v[{U+2*j}:{U+2*j+1}], v[{T+2}:{T+3}], v[{T+4}:{T+5}] op_sel_hi:[1,0,0]")
            for j in range(4):
                e(f"v_cvt_pk_bf16_f32 v{R+4*i+j}, v{U+2*j}, v{U+2*j+1}")
            last = e(f"ds_write_b128 v{vW}, v[{R+4*i}:{R+4*i+3}] offset:{woff + i*128}")
            if between and i in between: between[i]()
        return last

    def tr32_addr(self, vD, vL, nt_s, T):
        e = self.e
        e(f"v_lshrrev_b32 v{T}, 5, v{vL}")
        e(f"v_bfe_u32 v{T+1}, v{vL}, 2, 2")
        e(f"v_lshl_add_u32 v{T}, v{T}, 3, v{T+1}")
        e(f"v_lshlrev_b32 v{vD}, 7, v{T}")
        e(f"v_and_b32 v{T}, 1, v{vL}")
        e(f"v_bfe_u32 v{T+2}, v{vL}, 4, 1")
        e(f"v_lshl_add_u32 v{T}, v{T}, 1, v{T+2}")
        e(f"v_lshrrev_b32 v{T+1}, 1, v{T+1}")
        e(f"v_xor_b32 v{T+1}, s{nt_s}, v{T+1}")
        e(f"v_lshl_add_u32 v{T}, v{T+1}, 2, v{T}")
        e(f"v_lshl_add_u32 v{vD}, v{T}, 4, v{vD}")
        e(f"v_bfe_u32 v{T}, v{vL}, 1, 1")
        e(f"v_lshl_add_u32 v{vD}, v{T}, 3, v{vD}")

    def dma128_col(self, vD, vL, T):
        e = self.e
        e(f"v_bfe_u32 v{T}, v{vL}, 4, 1")
        e(f"v_lshlrev_b32 v{T}, 2, v{T}")
        e(f"v_and_b32 v{vD}, 7, v{vL}")
        e(f"v_xor_b32 v{vD}, v{vD}, v{T}")
        e(f"v_lshlrev_b32 v{vD}, 4, v{vD}")

    def epi_store(self, ACC, T, vP, soff):
        e = self.e
        for j in range(8):
            e(f"v_cvt_pk_bf16_f32 v{T+j}, v{ACC+2*j}, v{ACC+2*j+1}")
        fl = self.o.get("pflags", "sc1")
        e(f"buffer_store_dwordx4 v[{T}:{T+3}], v{vP}, s[{SRD_WS}:{SRD_WS+3}], s{soff} offen {fl}")
        return e(f"buffer_store_dwordx4 v[{T+4}:{T+7}], v{vP}, s[{SRD_WS}:{SRD_WS+3}], s{soff} offen offset:1024 {fl}")

    def entry(self):
        e = self.e
        self.stamp(0)
        e("s_cmp_ge_u32 s2, 256"); e("s_cbranch_scc1 L_end")
        e("s_load_dwordx16 s[4:19], s[0:1], 0")
        e("s_load_dwordx4 s[20:23], s[0:1], 64")
        e("s_load_dwordx2 s[24:25], s[0:1], 80")
        e("v_lshrrev_b32 v1, 6, v0")
        e(f"v_readfirstlane_b32 s{S_WAVE}, v1")
        e("v_and_b32 v0, 63, v0")
        e(f"s_and_b32 s{S_SL}, s2, 3")
        e(f"s_bfe_u32 s{S_RANK}, s2, 0x40003")
        e(f"s_bfe_u32 s{S_TILE}, s2, 0x10002"); e(f"s_lshl_b32 s{S_TILE}, s{S_TILE}, 4"); e(f"s_or_b32 s{S_TILE}, s{S_TILE}, s{S_RANK}")
        e(f"s_mov_b32 s{S_ONES}, 0x3f803f80"); e(f"s_mov_b32 s{S_HMASK}, 0xffff0000")
        e("v_lshrrev_b32 v1, 3, v0"); e(f"s_lshl_b32 s{S_T0}, s{S_WAVE}, 3"); e(f"v_add_u32 v1, s{S_T0}, v1")
        e("v_and_b32 v2, 7, v0"); e("v_lshlrev_b32 v2, 4, v2")
        e("v_mul_u32_u24 v3, 896, v1"); e("v_add_u32 v3, v3, v2")
        e(f"s_mul_i32 s{S_SOFF}, s{S_TILE}, {64*896}")
        e("s_waitcnt lgkmcnt(0)")
        self.srd(SRD_X, 4, 2048*896)
        self.xt = [e(f"buffer_load_dwordx4 v[{32+4*i}:{35+4*i}], v3, s[{SRD_X}:{SRD_X+3}], s{S_SOFF} offen offset:{128*i}") for i in range(7)]
        self.srd(SRD_WS, 24, PART_BYTES)
        e(f"s_lshl_b32 s{S_PB}, s{S_TILE}, 3"); e(f"s_lshr_b32 s{S_T0}, s2, 7"); e(f"s_lshl_b32 s{S_T0}, s{S_T0}, 2")
        e(f"s_add_u32 s{S_PB}, s{S_PB}, s{S_T0}"); e(f"s_add_u32 s{S_PB}, s{S_PB}, s{S_SL}"); e(f"s_mul_i32 s{S_PB}, s{S_PB}, 57344")
        e("s_cmp_ge_u32 s2, 128"); e("s_cbranch_scc1 L_att")

    def ffn(self):
        e = self.e; d = self.o["depth"]
        vXW, vXR, vTR0, vTR1, vHW, vBR, vP, vA0, vA1, vB0, vB1, vK2 = 4, 5, 6, 7, 8, 9, 10, 11, 12, 13, 14, 15
        T = 16; RAW = 32; GT = 60; ACC = 92; WF = 108; FR = 140
        NWF = 8
        self.srd(SRD_A, 12, 448*3584); self.srd(SRD_B, 16, 1792*896); self.srd(SRD_T, 14, 1792*2)
        U, MH, NT = S_T1, S_T2, S_T3
        e(f"s_and_b32 s{U}, s{S_WAVE}, 3"); e(f"s_and_b32 s{MH}, s{U}, 1"); e(f"s_lshr_b32 s{NT}, s{U}, 1")
        e("v_lshrrev_b32 v16, 3, v0"); e(f"s_lshl_b32 s{S_T0}, s{U}, 4"); e(f"v_add_u32 v16, s{S_T0}, v16")
        self.dma128_col(17, 0, 18)
        e(f"v_mul_u32_u24 v{vA0}, 3584, v16"); e(f"v_add_u32 v{vA0}, v{vA0}, v17"); e(f"v_add_u32 v{vA1}, {8*3584-1024}, v{vA0}")
        e(f"v_mul_u32_u24 v{vB0}, 896, v16"); e(f"v_add_u32 v{vB0}, v{vB0}, v17"); e(f"v_add_u32 v{vB1}, {8*896-1024}, v{vB0}")
        e(f"s_lshl_b32 s{S_DMAL}, s{U}, 11")
        e(f"s_mul_i32 s{S_GA}, s{S_SL}, 896"); e(f"s_mul_i32 s{S_GB}, s{S_SL}, {448*896}")
        e("v_lshlrev_b32 v18, 4, v0")
        tb = e(f"buffer_load_dwordx4 v[{GT}:{GT+3}], v18, s[{SRD_T}:{SRD_T+3}], s{S_GA} offen")
        e(f"v_mul_u32_u24 v{vXW}, {XP_F}, v1"); e(f"v_add_u32 v{vXW}, v{vXW}, v2")
        e("v_and_b32 v16, 31, v0"); e(f"s_lshl_b32 s{S_T0}, s{MH}, 5"); e(f"v_add_u32 v16, s{S_T0}, v16")
        e("v_lshrrev_b32 v17, 5, v0")
        e(f"v_mul_u32_u24 v{vXR}, {XP_F}, v16")
        e(f"v_lshl_add_u32 v{vHW}, v17, 5, v{vXR}"); e(f"s_lshl_b32 s{S_T0}, s{NT}, 6"); e(f"v_add_u32 v{vHW}, s{S_T0}, v{vHW}")
        e(f"v_lshl_add_u32 v{vXR}, v17, 4, v{vXR}")
        e(f"v_lshlrev_b32 v{vBR}, 6, v17"); e(f"s_lshl_b32 s{S_T0}, s{NT}, 7"); e(f"s_add_u32 s{S_T0}, s{S_T0}, {BIAS_OFF}"); e(f"v_add_u32 v{vBR}, s{S_T0}, v{vBR}")
        self.tr32_addr(vTR0, 0, NT, 16)
        e(f"v_add_u32 v{vTR0}, {RING_F}, v{vTR0}"); e(f"v_add_u32 v{vTR1}, {6*8192}, v{vTR0}")
        e(f"s_lshl_b32 s{S_T0}, s{MH}, 12"); e(f"s_lshl_b32 s{S_SOFF}, s{NT}, 11"); e(f"s_add_u32 s{S_T0}, s{S_T0}, s{S_SOFF}")
        e(f"v_lshlrev_b32 v{vP}, 4, v0"); e(f"v_add_u32 v{vP}, s{S_T0}, v{vP}")
        C1 = 2 * math.sqrt(2 / math.pi) * math.log2(math.e); C2 = C1 * 0.044715
        e(f"v_mov_b32 v{vK2}, {hx(f2u(-C2))}")
        e(f"s_cmp_ge_u32 s{S_WAVE}, 4"); e("s_cbranch_scc1 L_ffn_b")
        st = e.fork()

        b0pos = {n: (24 - d if n == 8 else 24) for n in range(1, 14)}
        def freed(n, i):
            if i == 0:
                if n == 0: return -1
                return 7*(n-1) + (b0pos[n] // 4) - 1
            done = (8 if i == 1 else 16) - d
            return 7*n + done // 4 - 1
        needed = lambda n, i: 7*n + (1, 3, 6)[i]
        issue = {}; hi = NRING_F - 1
        for n in range(14):
            for i in range(3):
                top = min(freed(n, i) + NRING_F, 97)
                issue[(n, i)] = list(range(hi + 1, top + 1)); hi = max(hi, top)

        def stream(sig):
            tok = {}
            def dma(Uidx):
                n, u = divmod(Uidx, 7)
                slot = RING_F + (Uidx % NRING_F) * 8192
                if n < 7: srd, va, vb, g, off = SRD_A, vA0, vA1, S_GA, n*128 + u*64*3584
                else: srd, va, vb, g, off = SRD_B, vB0, vB1, S_GB, (n-7)*128 + u*64*896
                e(f"s_add_u32 m0, s{S_DMAL}, {slot}")
                e(f"s_add_u32 s{S_SOFF}, s{g}, {off}")
                e(f"buffer_load_dwordx4 v{va}, s[{srd}:{srd+3}], s{S_SOFF} offen lds")
                tok[Uidx] = e(f"buffer_load_dwordx4 v{vb}, s[{srd}:{srd+3}], s{S_SOFF} offen offset:1024 lds")
            def barrier(n, i, lg=None):
                mine = [t for u, t in tok.items() if u <= needed(n, i)]
                e.wait(vm=max(mine) if mine else None, lg=lg)
                e("s_barrier")
            def rd_frag(k):
                return e(f"ds_read_b128 v[{FR+4*k}:{FR+4*k+3}], v{vXR} offset:{32*k}")
            def rd_bias(b):
                t = None
                for j in range(4): t = e(f"ds_read_b128 v[{ACC+4*j}:{ACC+4*j+3}], v{vBR} offset:{b*256 + 16*j}")
                return t
            mineU = [u for u in range(NRING_F) if u % 2 == sig]
            q = list(mineU)
            self.ln_stats(RAW, self.xt, T, between={3: lambda: dma(q.pop(0)), 5: lambda: dma(q.pop(0))})
            self.stamp(1)
            lastw = self.ln_apply(RAW, T, vXW, between={i: (lambda: dma(q.pop(0))) for i in (0, 2, 4, 6)})
            assert not q
            if sig == 1:
                e.wait(vm=tb)
                e(f"s_cmp_lg_u32 s{S_WAVE}, 7"); e("s_cbranch_scc1 L_nobias")
                for j in range(4):
                    e(f"v_lshlrev_b32 v{GT+8+2*j}, 16, v{GT+j}"); e(f"v_and_b32 v{GT+9+2*j}, s{S_HMASK}, v{GT+j}")
                e(f"v_lshlrev_b32 v16, 5, v0")
                e(f"ds_write_b128 v16, v[{GT+8}:{GT+11}] offset:{BIAS_OFF}")
                e(f"ds_write_b128 v16, v[{GT+12}:{GT+15}] offset:{BIAS_OFF+16}")
                e.label("L_nobias")
            e.wait_all(vm=False, lg=True, force=True)
            barrier(0, 0)
            self.stamp(2)
            pend_lg = None
            for n in range(14):
                mset = n % 2
                if mset == sig:
                    fly = {0: range(28), 7: range(20, 28), 8: range(24, 28)}.get(n, ())
                    rt = {}
                    if n == 0: pend_lg = rd_bias(0)
                    def reads(k):
                        if k in fly: rd_frag(k)
                        Uidx = 7*n + k // 4; sl = Uidx % NRING_F
                        base, off = (vTR0, sl*8192) if sl < 6 else (vTR1, (sl-6)*8192)
                        off += (k % 4) * 2048
                        w = WF + 4 * (k % NWF)
                        e(f"ds_read_b64_tr_b16 v[{w}:{w+1}], v{base} offset:{off}")
                        rt[k] = e(f"ds_read_b64_tr_b16 v[{w+2}:{w+3}], v{base} offset:{off+512}")
                    for k in range(d): reads(k)
                    for s in range(28):
                        if n < 13 and s == b0pos[n+1]: barrier(n+1, 0)
                        if s + d < 28:
                            if s + d == 8: barrier(n, 1)
                            if s + d == 16: barrier(n, 2)
                            reads(s + d)
                        e.wait(lg=rt[s])
                        w = WF + 4 * (s % NWF)
                        c = "0" if (s == 0 and n >= 7) else f"v[{ACC}:{ACC+15}]"
                        e(f"v_mfma_f32_32x32x16_bf16 v[{ACC}:{ACC+15}], v[{w}:{w+3}], v[{FR+4*s}:{FR+4*s+3}], {c}")
                    if n in (0, 1, 6, 7, 12, 13): self.stamp({0: 3, 1: 3, 6: 4, 7: 4, 12: 5, 13: 5}[n])
                else:
                    work = []; lgw = [None]
                    prev = n - 1
                    if n == 0:
                        work = [(lambda k=k: lgw.__setitem__(0, rd_frag(k))) for k in range(28)]
                    elif prev < 7:
                        def grp(g):
                            a = [ACC + 4*g + j for j in range(4)]; t = [GT + 8*(g % 2) + j for j in range(4)]
                            o = GT + 16 + 2*g
                            L = []
                            for j in range(4): L.append(f"v_mul_f32 v{t[j]}, v{a[j]}, v{a[j]}")
                            for j in range(4): L.append(f"v_fmaak_f32 v{t[j]}, v{t[j]}, v{vK2}, {hx(f2u(-C1))}")
                            for j in range(4): L.append(f"v_mul_f32 v{t[j]}, v{t[j]}, v{a[j]}")
                            for j in range(4): L.append(f"v_exp_f32 v{t[j]}, v{t[j]}")
                            for j in range(4): L.append(f"v_add_f32 v{t[j]}, 1.0, v{t[j]}")
                            for j in range(4): L.append(f"v_rcp_f32 v{t[j]}, v{t[j]}")
                            for j in range(4): L.append(f"v_mul_f32 v{t[j]}, v{t[j]}, v{a[j]}")
                            for j in range(2): L.append(f"v_cvt_pk_bf16_f32 v{o+j}, v{t[2*j]}, v{t[2*j+1]}")
                            W = [(lambda s=s: e(s)) for s in L]
                            if g % 2 == 1:
                                W.append(lambda: lgw.__setitem__(0, e(f"ds_write_b128 v{vHW}, v[{o-2}:{o+1}] offset:{prev*128 + 16*(g//2)}")))
                            return W
                        for g in range(4): work += grp(g)
                        extra = {6: range(20), 7: range(24)}.get(n, ())
                        if extra:
                            work = merge(work, [(lambda k=k: lgw.__setitem__(0, rd_frag(k))) for k in extra])
                    else:
                        def est():
                            e(f"s_add_u32 s{S_T0}, s{S_PB}, {(prev-7)*8192}")
                            self.epi_store(ACC, GT, vP, S_T0)
                        work = [est]
                    if n + 1 < 7: work.append(lambda: lgw.__setitem__(0, rd_bias(n + 1)))
                    fr = (0.25, 0.57, 1.0) if (1 <= n <= 7) else ((0.34, 0.67, 1.0) if n == 0 else (1.0, 1.0, 1.0))
                    pos = 0
                    for i in range(3):
                        if i > 0: barrier(n, i)
                        end = int(round(fr[i] * len(work)))
                        first = n >= 8 and i == 0
                        if first:
                            for f in work[pos:end]: f()
                        for Uidx in issue[(n, i)]: dma(Uidx)
                        if not first:
                            for f in work[pos:end]: f()
                        pos = end
                    if n < 13:
                        e.wait_all(vm=False, lg=True)
                        barrier(n + 1, 0)
            if sig == 1:
                e(f"s_add_u32 s{S_T0}, s{S_PB}, {6*8192}")
                self.epi_store(ACC, GT, vP, S_T0)
            self.stamp(6)
            if self.o["stamps"]:
                e("s_waitcnt vmcnt(0)"); self.stamp(7)
            self.write_stamps(f"f{sig}")
            e("s_endpgm")
        stream(0)
        e.label("L_ffn_b"); e.restore(st)
        stream(1)

    def att(self, st0):
        e = self.e
        e.label("L_att"); e.restore(st0)
        T = 16; RAW = 32
        vXW, vP, vOR, vT0, vT1 = 4, 5, 6, 7, 8
        self.srd(SRD_A, 6, 448*2688); self.srd(SRD_B, 8, 448*896)
        U, MH, NT = S_T1, S_T2, S_T3
        e(f"s_and_b32 s{U}, s{S_WAVE}, 3"); e(f"s_and_b32 s{MH}, s{U}, 1"); e(f"s_lshr_b32 s{NT}, s{U}, 1")
        e(f"v_mul_u32_u24 v{vXW}, {XP_A}, v1"); e(f"v_add_u32 v{vXW}, v{vXW}, v2")
        e(f"s_lshl_b32 s{S_T0}, s{MH}, 12"); e(f"s_lshl_b32 s{S_K2}, s{NT}, 11"); e(f"s_add_u32 s{S_T0}, s{S_T0}, s{S_K2}")
        e(f"v_lshlrev_b32 v{vP}, 4, v0"); e(f"v_add_u32 v{vP}, s{S_T0}, v{vP}")
        e("v_and_b32 v16, 31, v0"); e(f"s_lshl_b32 s{S_T0}, s{MH}, 5"); e(f"v_add_u32 v16, s{S_T0}, v16")
        e("v_lshrrev_b32 v17, 5, v0"); e(f"v_mul_u32_u24 v{vOR}, {OP}, v16"); e(f"v_lshl_add_u32 v{vOR}, v17, 4, v{vOR}")
        self.tr32_addr(vT0, 0, NT, 16)
        e(f"s_lshr_b32 s{S_K2}, s{S_WAVE}, 2")
        e(f"s_mul_i32 s{S_T0}, s{S_K2}, {WO_BLK}"); e(f"s_add_u32 s{S_T0}, s{S_T0}, {WO_OFF}")
        e(f"v_add_u32 v{vT0}, s{S_T0}, v{vT0}"); e(f"v_add_u32 v{vT1}, {4*WO_BLK}, v{vT0}")
        e(f"s_lshl_b32 s{S_T0}, s{S_K2}, 13"); e(f"s_add_u32 s{S_PB}, s{S_PB}, s{S_T0}")
        e(f"s_cmp_ge_u32 s{S_WAVE}, 4"); e("s_cbranch_scc1 L_att_ld")
        st = e.fork()

        vXR, vW = 9, 10
        vOW0, vOW1 = 14, 15
        MO, MP, MF = 16, 20, 24
        XF = 28; WFr = 68; AQ = 116; AK = 148; AV = 188;
        self.ln_stats(RAW, self.xt, T)
        self.stamp(1)
        self.ln_apply(RAW, T, vXW, woff=16*XP_A)
        e("v_and_b32 v28, 15, v0"); e("v_lshrrev_b32 v29, 4, v0")
        e(f"v_mul_u32_u24 v{vXR}, {XP_A}, v28"); e(f"v_lshl_add_u32 v{vXR}, v29, 4, v{vXR}")
        e("v_bfe_u32 v30, v0, 2, 2")
        e("v_lshl_add_u32 v31, v29, 3, v30"); e("v_lshlrev_b32 v31, 8, v31")
        e(f"v_add_u32 v31, {RING_A}, v31")
        e("v_and_b32 v60, 1, v29"); e("v_lshl_add_u32 v60, v60, 2, v30")
        e("v_lshlrev_b32 v60, 5, v60"); e("v_and_b32 v61, 3, v0"); e("v_lshl_add_u32 v60, v61, 3, v60")
        e(f"s_mul_i32 s{S_T0}, s{S_WAVE}, 56"); e(f"v_add_u32 v60, s{S_T0}, v60")
        for dt in range(2):
            e(f"v_add_u32 v61, {32*dt}, v60"); e("v_and_b32 v61, 255, v61")
            e(f"v_add_u32 v{vW+2*dt}, v61, v31"); e(f"v_add_u32 v{vW+2*dt+1}, {5*8192}, v{vW+2*dt}")
        e(f"v_mul_u32_u24 v{vOW0}, {OP}, v28"); e(f"v_add_u32 v61, 224, v{vOW0}")
        e(f"v_lshl_add_u32 v{vOW0}, v29, 3, v{vOW0}"); e(f"v_add_u32 v{vOW0}, s{S_T0}, v{vOW0}")
        e(f"v_add_u32 v{vOW1}, 32, v{vOW0}"); e("v_cmp_eq_u32 vcc, 3, v29"); e(f"v_cndmask_b32 v{vOW1}, v{vOW1}, v61, vcc")
        NEG = hx(f2u(-1e30))
        e(f"v_mov_b32 v62, {NEG}")
        e("v_lshlrev_b32 v60, 2, v29"); e("v_sub_u32 v60, v28, v60")
        for r in range(4):
            for (M, add) in ((MO, -r), (MP, 16 - r)):
                e(f"v_add_u32 v61, {add}, v60"); e("v_and_b32 v61, 0xfffffff1, v61")
                e("v_cmp_eq_u32 vcc, 0, v61"); e(f"v_cndmask_b32 v{M+r}, v62, v61, vcc")
        e(f"s_cmp_eq_u32 s{S_TILE}, 0"); e("s_cselect_b64 vcc, -1, 0")
        for r in range(4): e(f"v_cndmask_b32 v{MF+r}, v{MP+r}, v62, vcc")
        def reads(s):
            L = []; b = s % 2
            def w(tau, dt, ee):
                sl = (3*s + tau) % NRING_A
                base, off = (vW + 2*dt, sl*8192) if sl < 5 else (vW + 2*dt + 1, (sl-5)*8192)
                r = WFr + 24*b + 8*tau + 4*dt + 2*ee
                return f"ds_read_b64_tr_b16 v[{r}:{r+1}], v{base} offset:{off + 1024*ee}"
            for t in range(5): L.append(f"ds_read_b128 v[{XF+20*b+4*t}:{XF+20*b+4*t+3}], v{vXR} offset:{t*16*XP_A + 64*s}")
            for tau in (1, 2, 0):
                for dt in range(2):
                    for ee in range(2): L.append(w(tau, dt, ee))
            return [(lambda x=x: e(x)) for x in L]
        def mfmas(s):
            L = []; b = s % 2
            for tau in (1, 2, 0):
                for t in range(5):
                    if tau == 0 and t == 0: continue
                    for dt in range(2):
                        wf = vr(WFr + 24*b + 8*tau + 4*dt, 4); xf = vr(XF + 20*b + 4*t, 4)
                        acc = {0: AQ + 16*dt + 4*(t-1), 1: AK + 20*dt + 4*t, 2: AV + 20*dt + 4*t}[tau]
                        c = "0" if s == 0 else vr(acc, 4)
                        a_, b_ = (xf, wf) if tau == 2 else (wf, xf)
                        L.append(f"v_mfma_f32_16x16x32_bf16 {vr(acc,4)}, {a_}, {b_}, {c}")
            return [(lambda x=x: e(x)) for x in L]
        for s in range(15):
            e.wait_all(vm=False, lg=True, force=(s == 0))
            e("s_barrier")
            if s == 0: self.stamp(2)
            R = reads(s) if s < 14 else []
            M = mfmas(s - 1) if s > 0 else []
            if M and R:
                seq = merge(M[:22], R) + M[22:]
            else: seq = M + R
            for f in seq: f()
        self.stamp(3)
        QF = 28; KF = 44; VP = 64; SS = 84
        TT = 228
        for m in range(4):
            e(f"v_mov_b32 v{QF+4*m+2}, 0"); e(f"v_mov_b32 v{QF+4*m+3}, 0")
        for t in range(5):
            for dt in range(2):
                for j in range(2): e(f"v_cvt_pk_bf16_f32 v{KF+4*t+2*dt+j}, v{AK+20*dt+4*t+2*j}, v{AK+20*dt+4*t+2*j+1}")
        for dt in range(2):
            for t in range(5):
                for j in range(2): e(f"v_cvt_pk_bf16_f32 v{VP+10*dt+2*t+j}, v{AV+20*dt+4*t+2*j}, v{AV+20*dt+4*t+2*j+1}")
        for m in range(4):
            for j in range(2): e(f"v_cvt_pk_bf16_f32 v{QF+4*m+j}, v{AQ+4*m+2*j}, v{AQ+4*m+2*j+1}")
        e("s_mov_b32 exec_hi, 0xffff")
        for m in range(4):
            for j in range(2): e(f"v_cvt_pk_bf16_f32 v{QF+4*m+2+j}, v{AQ+16+4*m+2*j}, v{AQ+16+4*m+2*j+1}")
        e("s_mov_b32 exec_hi, -1")
        for m in range(4):
            e(f"v_mfma_f32_16x16x32_bf16 {vr(SS+8*m,4)}, {vr(KF+4*m,4)}, {vr(QF+4*m,4)}, {vr(MF if m == 0 else MP,4)}")
            e(f"v_mfma_f32_16x16x32_bf16 {vr(SS+8*m+4,4)}, {vr(KF+4*m+4,4)}, {vr(QF+4*m,4)}, {vr(MO,4)}")
        CS = 28 ** -0.5 * math.log2(math.e)
        e(f"s_mov_b32 s{S_T0}, {hx(f2u(CS))}")
        mx = lambda m: TT + m; cp = lambda m: TT + 4 + m; sm = lambda m: TT + 8 + m
        def allm(fn):
            for m in range(4): e(fn(m))
        allm(lambda m: f"v_max3_f32 v{mx(m)}, v{SS+8*m}, v{SS+8*m+1}, v{SS+8*m+2}")
        allm(lambda m: f"v_max3_f32 v{mx(m)}, v{mx(m)}, v{SS+8*m+3}, v{SS+8*m+4}")
        allm(lambda m: f"v_max3_f32 v{mx(m)}, v{mx(m)}, v{SS+8*m+5}, v{SS+8*m+6}")
        allm(lambda m: f"v_max_f32 v{mx(m)}, v{mx(m)}, v{SS+8*m+7}")
        for sw in ("v_permlane16_swap_b32", "v_permlane32_swap_b32"):
            allm(lambda m: f"v_mov_b32 v{cp(m)}, v{mx(m)}")
            allm(lambda m: f"{sw} v{mx(m)}, v{cp(m)}")
            allm(lambda m: f"v_max_f32 v{mx(m)}, v{mx(m)}, v{cp(m)}")
        allm(lambda m: f"v_mul_f32 v{mx(m)}, s{S_T0}, v{mx(m)}")
        for r in range(8): allm(lambda m: f"v_fma_f32 v{SS+8*m+r}, v{SS+8*m+r}, s{S_T0}, -v{mx(m)}")
        for r in range(8): allm(lambda m: f"v_exp_f32 v{SS+8*m+r}, v{SS+8*m+r}")
        PF = QF
        for j in range(4): allm(lambda m: f"v_cvt_pk_bf16_f32 v{PF+4*m+j}, v{SS+8*m+2*j}, v{SS+8*m+2*j+1}")
        OO = AQ
        for m in range(4):
            for dt in range(2):
                e(f"v_mfma_f32_16x16x32_bf16 {vr(OO+8*m+4*dt,4)}, {vr(VP+10*dt+2*m,4)}, {vr(PF+4*m,4)}, 0")
        allm(lambda m: f"v_add_f32 v{sm(m)}, v{SS+8*m}, v{SS+8*m+1}")
        for r in range(2, 8): allm(lambda m: f"v_add_f32 v{sm(m)}, v{sm(m)}, v{SS+8*m+r}")
        for sw in ("v_permlane16_swap_b32", "v_permlane32_swap_b32"):
            allm(lambda m: f"v_mov_b32 v{cp(m)}, v{sm(m)}")
            allm(lambda m: f"{sw} v{sm(m)}, v{cp(m)}")
            allm(lambda m: f"v_add_f32 v{sm(m)}, v{sm(m)}, v{cp(m)}")
        allm(lambda m: f"v_rcp_f32 v{sm(m)}, v{sm(m)}")
        for r in range(8): allm(lambda m: f"v_mul_f32 v{OO+8*m+r}, v{OO+8*m+r}, v{sm(m)}")
        for m in range(4):
            for j in range(4): e(f"v_cvt_pk_bf16_f32 v{KF+4*m+j}, v{OO+8*m+2*j}, v{OO+8*m+2*j+1}")
            e(f"ds_write_b64 v{vOW0}, {vr(KF+4*m,2)} offset:{m*16*OP}")
            e(f"ds_write_b64 v{vOW1}, {vr(KF+4*m+2,2)} offset:{m*16*OP}")
        self.stamp(4)
        e("s_branch L_att_s2")

        e.label("L_att_ld"); e.restore(st)
        vQ0, vQ1, vO0 = 9, 10, 11
        RAW2 = 64
        e(f"s_sub_u32 s{S_T0}, s{S_SOFF}, {(32+16)*896}")
        e(f"s_cmp_eq_u32 s{S_TILE}, 0"); e(f"s_cselect_b32 s{S_T0}, 0x7f000000, s{S_T0}")
        e(f"s_cmp_ge_u32 s{S_WAVE}, 6"); e(f"s_cselect_b32 s{S_T0}, 0x7f000000, s{S_T0}")
        ht = [e(f"buffer_load_dwordx4 v[{RAW2+4*i}:{RAW2+4*i+3}], v3, s[{SRD_X}:{SRD_X+3}], s{S_T0} offen offset:{128*i}") for i in range(7)]
        e("v_lshrrev_b32 v16, 4, v0")
        e(f"s_and_b32 s{S_T0}, s{U}, 1"); e(f"s_lshl_b32 s{S_T0}, s{S_T0}, 2"); e(f"v_add_u32 v17, s{S_T0}, v16")
        e("v_lshlrev_b32 v17, 1, v17"); e("v_sub_u32 v17, v0, v17"); e("v_and_b32 v17, 15, v17"); e("v_min_u32 v17, 13, v17")
        e(f"s_lshl_b32 s{S_T0}, s{U}, 3"); e(f"v_add_u32 v16, s{S_T0}, v16")
        e(f"v_mul_u32_u24 v{vQ0}, 2688, v16"); e(f"v_lshl_add_u32 v{vQ0}, v17, 4, v{vQ0}"); e(f"v_add_u32 v{vQ1}, {4*2688-1024}, v{vQ0}")
        e(f"s_lshl_b32 s{S_DMAL}, s{U}, 11"); e(f"s_mul_i32 s{S_GA}, s{S_SL}, 224")
        e("v_lshrrev_b32 v16, 3, v0"); e(f"v_add_u32 v16, s{S_T0}, v16")
        self.dma128_col(17, 0, 18)
        e(f"v_mul_u32_u24 v{vO0}, 896, v16"); e(f"v_add_u32 v{vO0}, v{vO0}, v17")
        e(f"s_mul_i32 s{S_GB}, s{S_SL}, {112*896}")
        tok = {}
        def dma(Uidx):
            s, tau = divmod(Uidx, 3)
            e(f"s_add_u32 m0, s{S_DMAL}, {RING_A + (Uidx % NRING_A)*8192}")
            e(f"s_add_u32 s{S_SOFF}, s{S_GA}, {s*32*2688 + tau*896}")
            e(f"buffer_load_dwordx4 v{vQ0}, s[{SRD_A}:{SRD_A+3}], s{S_SOFF} offen lds")
            tok[Uidx] = e(f"buffer_load_dwordx4 v{vQ1}, s[{SRD_A}:{SRD_A+3}], s{S_SOFF} offen offset:1024 lds")
        q = list(range(NRING_A))
        if self.o["prefetch"]: self.prefetch(0)
        self.ln_stats(RAW, self.xt, T, between={5: lambda: dma(q.pop(0))})
        self.ln_apply(RAW, T, vXW, woff=16*XP_A, between={i: (lambda: dma(q.pop(0))) for i in (1, 4)})
        e(f"s_cmp_ge_u32 s{S_WAVE}, 6"); e("s_cbranch_scc1 L_nohalo")
        sv = e.fork()
        self.ln_stats(RAW2, ht, T)
        e(f"v_subrev_u32 v{vXW}, {32*XP_A}, v{vXW}")
        self.ln_apply(RAW2, T, vXW)
        e.label("L_nohalo"); e.vm_done = sv[2]
        e("s_nop 4")
        while q: dma(q.pop(0))
        hi = NRING_A - 1
        for s in range(15):
            if s < 14: e.wait(vm=tok[3*s + 2])
            if s == 0: e.wait_all(vm=False, lg=True, force=True)
            e("s_barrier")
            top = min(3*s - 1 + NRING_A, 41)
            for Uidx in range(hi + 1, top + 1): dma(Uidx)
            hi = max(hi, top)
            if self.o["prefetch"] and s == 2: self.prefetch(1)
        e(f"s_lshl_b32 s{S_DMAL}, s{U}, 10")
        for i in range(4):
            if i == 3:
                e(f"s_cmp_ge_u32 s{U}, 2"); e("s_cbranch_scc1 L_att_s2")
            for b in range(7):
                e(f"s_add_u32 m0, s{S_DMAL}, {WO_OFF + b*WO_BLK + i*4096}")
                e(f"s_add_u32 s{S_SOFF}, s{S_GB}, {b*128 + i*32*896}")
                e(f"buffer_load_dwordx4 v{vO0}, s[{SRD_B}:{SRD_B+3}], s{S_SOFF} offen lds")
        e.label("L_att_s2"); e.fence()
        e.wait_all(force=True)
        e("s_barrier")
        self.stamp(5)
        OF = 28; W2 = 56; A2 = 116; ET = 180
        for k in range(7): e(f"ds_read_b128 {vr(OF+4*k,4)}, v{vOR} offset:{32*k}")
        def rdw(it):
            t = None
            base, off = (vT0, it*2*WO_BLK) if it < 2 else (vT1, (it-2)*2*WO_BLK)
            tk = []
            for k in range(7):
                w = W2 + 28*(it % 2) + 4*k
                e(f"ds_read_b64_tr_b16 v[{w}:{w+1}], v{base} offset:{off + k*2048}")
                tk.append(e(f"ds_read_b64_tr_b16 v[{w+2}:{w+3}], v{base} offset:{off + k*2048 + 512}"))
            return tk
        def mm(it, tk):
            for k in range(7):
                e.wait(lg=tk[k])
                a = A2 + 16*it; w = W2 + 28*(it % 2) + 4*k
                e(f"v_mfma_f32_32x32x16_bf16 {vr(a,16)}, {vr(w,4)}, {vr(OF+4*k,4)}, {'0' if k == 0 else vr(a,16)}")
        def st_(it):
            e(f"s_add_u32 s{S_T0}, s{S_PB}, {it*16384}")
            self.epi_store(A2 + 16*it, ET + 8*it, vP, S_T0)
        t0 = rdw(0); mm(0, t0)
        t1 = rdw(1); mm(1, t1); st_(0)
        t2 = rdw(2); mm(2, t2); st_(1)
        e(f"s_cmp_ge_u32 s{S_WAVE}, 4"); e("s_cbranch_scc1 L_att_last")
        t3 = rdw(3); mm(3, t3); st_(3)
        e.label("L_att_last"); e("s_nop 11")
        st_(2)
        self.stamp(6)
        if self.o["stamps"]:
            e("s_waitcnt vmcnt(0)"); self.stamp(7)
        self.write_stamps("a")
        e("s_endpgm")

    def prefetch(self, part):
        e = self.e
        W = S_K2 + 1
        e(f"s_and_b32 s{W}, s{S_WAVE}, 3"); e(f"s_lshl_b32 s{W}, s{W}, 4"); e(f"s_add_u32 s{W}, s{W}, s{S_RANK}")
        a, b = W + 1, W + 2
        e(f"s_mul_i32 s{a}, s{W}, 9363"); e(f"s_lshr_b32 s{a}, s{a}, 16")
        e(f"s_mul_i32 s{b}, s{a}, 7"); e(f"s_sub_u32 s{b}, s{W}, s{b}")
        if part == 0:
            self.srd(SRD_T, 12, 448*3584)
            e(f"s_mul_i32 s{S_T0}, s{b}, {64*3584}"); e(f"s_lshl_b32 s{S_SOFF}, s{a}, 7"); e(f"s_add_u32 s{S_T0}, s{S_T0}, s{S_SOFF}")
            e(f"s_mul_i32 s{S_SOFF}, s{S_SL}, 896"); e(f"s_add_u32 s{S_T0}, s{S_T0}, s{S_SOFF}")
            e(f"s_cmp_ge_u32 s{W}, 49"); e(f"s_cselect_b32 s{S_T0}, 0x7f000000, s{S_T0}")
            e("v_mul_u32_u24 v12, 3584, v0")
            e(f"buffer_load_dword v13, v12, s[{SRD_T}:{SRD_T+3}], s{S_T0} offen")
            e(f"s_mul_i32 s{S_T0}, s{a}, 21846"); e(f"s_lshr_b32 s{S_T0}, s{S_T0}, 16")
            e(f"s_mul_i32 s{S_SOFF}, s{S_T0}, {896 - 3*108}"); e(f"s_mul_i32 s{S_T0}, s{a}, 108"); e(f"s_add_u32 s{S_T0}, s{S_T0}, s{S_SOFF}")
            e(f"s_mul_i32 s{S_SOFF}, s{b}, {64*2688}"); e(f"s_add_u32 s{S_T0}, s{S_T0}, s{S_SOFF}"); e(f"s_add_u32 s{S_T0}, s{S_T0}, s{S_GA}")
            e(f"s_cmp_ge_u32 s{W}, 63"); e(f"s_cselect_b32 s{S_T0}, 0x7f000000, s{S_T0}")
            e("v_mul_u32_u24 v12, 2688, v0")
            e(f"buffer_load_dword v13, v12, s[{SRD_A}:{SRD_A+3}], s{S_T0} offen")
        else:
            self.srd(SRD_T, 16, 1792*896)
            e(f"s_lshl_b32 s{S_T0}, s{W}, 13"); e(f"s_mul_i32 s{S_SOFF}, s{S_SL}, {448*896}"); e(f"s_add_u32 s{S_T0}, s{S_T0}, s{S_SOFF}")
            e(f"s_cmp_ge_u32 s{W}, 49"); e(f"s_cselect_b32 s{S_T0}, 0x7f000000, s{S_T0}")
            e("v_lshlrev_b32 v12, 7, v0")
            e(f"buffer_load_dword v13, v12, s[{SRD_T}:{SRD_T+3}], s{S_T0} offen")
            e(f"s_sub_u32 s{S_T0}, s{W}, 51"); e(f"s_lshl_b32 s{S_T0}, s{S_T0}, 13"); e(f"s_add_u32 s{S_T0}, s{S_T0}, s{S_GB}")
            e(f"s_cmp_lt_u32 s{W}, 51"); e(f"s_cselect_b32 s{S_T0}, 0x7f000000, s{S_T0}")
            e(f"buffer_load_dword v13, v12, s[{SRD_B}:{SRD_B+3}], s{S_T0} offen")

    def reduce_kernel(self):
        e = Emit(); old = self.e; self.e = e
        e("s_cmp_ge_u32 s2, 256"); e("s_cbranch_scc1 L_rend")
        e("s_load_dwordx2 s[4:5], s[0:1], 0")
        e("s_load_dwordx4 s[16:19], s[0:1], 56")
        e("s_load_dwordx2 s[24:25], s[0:1], 80")
        e("v_lshrrev_b32 v1, 6, v0"); e(f"v_readfirstlane_b32 s{S_WAVE}, v1"); e("v_and_b32 v0, 63, v0")
        e("v_lshrrev_b32 v1, 3, v0"); e("v_and_b32 v2, 7, v0")
        e("v_lshrrev_b32 v3, 2, v1"); e("v_lshlrev_b32 v3, 11, v3")
        e("v_and_b32 v4, 1, v1"); e("v_lshl_add_u32 v3, v4, 10, v3")
        e("v_bfe_u32 v4, v1, 1, 1"); e("v_lshl_add_u32 v3, v4, 9, v3")
        e("v_lshl_add_u32 v3, v2, 4, v3")
        e("s_lshr_b32 s6, s2, 3"); e("s_and_b32 s7, s2, 7")
        e("s_mul_i32 s8, s6, 458752"); e(f"s_lshl_b32 s9, s{S_WAVE}, 13"); e("s_add_u32 s8, s8, s9")
        e("s_lshr_b32 s9, s7, 2"); e("s_lshl_b32 s9, s9, 12"); e("s_add_u32 s8, s8, s9")
        e("s_and_b32 s9, s7, 3"); e("s_lshl_b32 s9, s9, 7"); e("s_add_u32 s8, s8, s9")
        e("v_mul_u32_u24 v5, 896, v2"); e("v_lshl_add_u32 v5, v1, 4, v5")
        e("v_lshlrev_b32 v6, 4, v1")
        e("s_mul_i32 s10, s2, 7168"); e(f"s_lshl_b32 s11, s{S_WAVE}, 7"); e("s_add_u32 s10, s10, s11")
        e("s_mov_b32 s12, 0x3f80"); e("s_mov_b32 s13, 0x3f800000")
        e("s_waitcnt lgkmcnt(0)")
        self.srd(SRD_WS, 24, PART_BYTES); self.srd(SRD_X, 4, 2048*896); self.srd(SRD_A, 16, 896); self.srd(SRD_B, 18, 2048*896)
        tk = []
        for p in range(8):
            tk.append(e(f"buffer_load_dwordx4 {vr(16+4*p,4)}, v3, s[{SRD_WS}:{SRD_WS+3}], s8 offen"))
            if p < 7: e("s_add_u32 s8, s8, 57344")
        tk.append(e(f"buffer_load_dwordx4 {vr(48,4)}, v5, s[{SRD_X}:{SRD_X+3}], s10 offen"))
        tk.append(e(f"buffer_load_dwordx4 {vr(52,4)}, v6, s[{SRD_A}:{SRD_A+3}], s11 offen"))
        for j in range(8): e(f"v_mov_b32 v{8+j}, 0")
        for p in range(10):
            e.wait(vm=tk[p])
            for j in range(4):
                e(f"v_dot2c_f32_bf16 v{8+2*j}, s12, v{16+4*p+j}")
                e(f"v_dot2c_f32_bf16 v{9+2*j}, s13, v{16+4*p+j}")
        for j in range(4): e(f"v_cvt_pk_bf16_f32 v{56+j}, v{8+2*j}, v{9+2*j}")
        e(f"buffer_store_dwordx4 v[56:59], v5, s[{SRD_B}:{SRD_B+3}], s10 offen")
        e.label("L_rend"); e("s_endpgm")
        self.e = old
        return e.text()

    def build(self):
        e = self.e
        self.entry()
        st0 = e.fork()
        self.ffn()
        self.att(st0)
        e.label("L_end"); e("s_endpgm")
        hdr = open("parallel_sum__sliding_local_dilated__dense_activation_gelu__prompt.s.ref").read().split("; Override launch")[0]
        def desc(name, vg):
            return f""".p2align 6
.amdhsa_kernel {name}
  .amdhsa_next_free_vgpr {vg}
  .amdhsa_next_free_sgpr 102
  .amdhsa_accum_offset {vg}
  .amdhsa_group_segment_fixed_size 0
  .amdhsa_kernarg_size 88
  .amdhsa_user_sgpr_count 2
  .amdhsa_user_sgpr_kernarg_segment_ptr 1
  .amdhsa_system_sgpr_workgroup_id_x 1
.end_amdhsa_kernel
"""
        ks = lambda n: f".globl {n}\n.p2align 8\n.type {n},@function\n{n}:\n"
        s = hdr
        s += f"; @launch kernel={KNAME} grid=(256,1,1) block=(512,1,1) lds=163840\n"
        s += "; @launch kernel=reduce_kernel grid=(256,1,1) block=(448,1,1) lds=0\n"
        s += '.amdgcn_target "amdgcn-amd-amdhsa--gfx950"\n.text\n'
        s += ks(KNAME) + e.text()
        s += ks("reduce_kernel") + self.reduce_kernel()
        s += '.section .rodata,"a"\n' + desc(KNAME, 256) + desc("reduce_kernel", 64)
        return s

if __name__ == "__main__":
    out = sys.argv[1]
    opts = {}
    for a in sys.argv[2:]:
        k, v = a.split("="); opts[k] = eval(v)
    g = Gen(**opts)
    open(out, "w").write(g.build())
    print("instr", g.e.ninstr, "nop states", g.e.nops)
```
